```python
import torch

def _softmax(x, axis=-1):
    return torch.softmax(x, dim=axis)
def _gelu(x):
    return torch.nn.functional.gelu(x, approximate="tanh")
def _silu(x):
    return torch.nn.functional.silu(x)
def _sigmoid(x):
    return torch.sigmoid(x)
def _layernorm(x, axis=-1, eps=1e-5):
    m = x.mean(dim=axis, keepdim=True)
    v = x.var(dim=axis, keepdim=True, unbiased=False)
    return (x - m) / torch.sqrt(v + eps)
def _scatter_add(tgt, idx, src, axis=0):
    return tgt.clone().index_add_(axis, idx, src)
def _segment_sum(src, seg, n):
    out = torch.zeros((n,) + src.shape[1:], dtype=src.dtype)
    return out.index_add_(0, seg, src)
def _pad(x, pw):
    flat = tuple(v for pair in reversed(pw) for v in pair)
    return torch.nn.functional.pad(x, flat)

kernel_name = 'recurrent_scan__ssm_conv_s4d__dense_activation_mish__prompt'

def setup_inputs():

    _w = (lambda a: (lambda t: t.to(torch.bfloat16) if t.is_floating_point() else t)(torch.as_tensor(a)))
    def _A_setup():
        Bsz, L, D, N = 1, 2048, 512, 128
        return {
            "u": _w((lambda *s: torch.randn(*s, dtype=torch.bfloat16) * 0.05)(Bsz, L, D)),
            "log_A_real": _w((lambda *s: torch.randn(*s, dtype=torch.bfloat16) * 3.2)(D, N) * 0.5),
            "A_imag": _w((lambda *s: torch.randn(*s, dtype=torch.bfloat16) * 0.2)(D, N) * 3.14),
            "C_real": _w((lambda *s: torch.randn(*s, dtype=torch.bfloat16) * 0.8)(D, N) / N ** 0.5),
            "C_imag": _w((lambda *s: torch.randn(*s, dtype=torch.bfloat16) * 0.8)(D, N) / N ** 0.5),
            "log_dt": _w((lambda *s: torch.randn(*s, dtype=torch.bfloat16) * 0.2)(D) * 0.5 - 4.0),
            "D_skip": _w((lambda *s: torch.randn(*s, dtype=torch.bfloat16) * 0.2)(D)),
        }
    _A_in = _A_setup()

    def _B_setup():
        B, S, D, F = 1, 2048, 512, 1792
        return {
            "x": _w((lambda *s: torch.randn(*s, dtype=torch.bfloat16) * 0.05)(B, S, D)),
            "w1": _w((lambda *s: torch.randn(*s, dtype=torch.bfloat16) * 0.8)(D, F) * (D ** -0.5)),
            "b1": _w((lambda *s: torch.randn(*s, dtype=torch.bfloat16) * 0.4)(F)),
            "w2": _w((lambda *s: torch.randn(*s, dtype=torch.bfloat16) * 0.1)(F, D) * (F ** -0.5)),
        }
    _B_in = _B_setup()

    return {
        "A_u": _A_in["u"],
        "A_log_A_real": _A_in["log_A_real"],
        "A_A_imag": _A_in["A_imag"],
        "A_C_real": _A_in["C_real"],
        "A_C_imag": _A_in["C_imag"],
        "A_log_dt": _A_in["log_dt"],
        "A_D_skip": _A_in["D_skip"],
        "B_x": _B_in["x"],
        "B_w1": _B_in["w1"],
        "B_b1": _B_in["b1"],
        "B_w2": _B_in["w2"],
    }

def reference(A_u, A_log_A_real, A_A_imag, A_C_real, A_C_imag, A_log_dt, A_D_skip, B_x, B_w1, B_b1, B_w2):
    def _A_ref(u, log_A_real, A_imag, C_real, C_imag, log_dt, D_skip):
        L = u.shape[1]
        dt = torch.exp(log_dt)
        A = -torch.exp(log_A_real) + 1j * A_imag
        C = (C_real + 1j * C_imag) * dt[:, None]
        pos = (lambda x, dt: x.to(dt))(torch.arange(L), log_dt.dtype)
        P = torch.exp((A * dt[:, None])[:, :, None] * pos[None, None, :])
        K = 2.0 * torch.einsum("dn,dnl->dl", C, P).real
        L2 = 2 * L
        u_t = (lambda x, *d: x.permute(*d))(u, 0, 2, 1)
        Kf = (lambda x, *a, **k: torch.fft.rfft(x.float(), *a, **k))(K, L2)
        Uf = (lambda x, *a, **k: torch.fft.rfft(x.float(), *a, **k))(u_t, L2)
        y = (lambda x, *a, **k: torch.fft.irfft(x, *a, **k).to(torch.bfloat16))(Uf * Kf[None, :, :], L2)[:, :, :L]
        y = (lambda x, *d: x.permute(*d))(y, 0, 2, 1)
        return y + u * D_skip[None, None, :]

    def _B_ref(x, w1, b1, w2):
        h = torch.einsum("bsd,df->bsf", x, w1) + b1
        sp = torch.log1p(torch.exp(-torch.abs(h))) + torch.where(h > 0, h, torch.zeros_like(h))
        act = h * torch.tanh(sp)
        return torch.einsum("bsf,fd->bsd", act, w2)

    x = A_u
    xn = _layernorm(x, axis=-1)
    s = _A_ref(xn, A_log_A_real, A_A_imag, A_C_real, A_C_imag, A_log_dt, A_D_skip)
    g = _silu(_B_ref(xn, B_w1, B_b1, B_w2))
    return x + s * g
```

```python
import re

TRANS = ('v_exp_f32', 'v_log_f32', 'v_rcp_f32', 'v_rsq_f32', 'v_sqrt_f32', 'v_sin_f32', 'v_cos_f32')
REG = re.compile(r'\b([vsa])(?:(\d+)|\[(\d+):(\d+)\])')

def regs_of(tok):
    out = []
    for m in REG.finditer(tok):
        k = m.group(1)
        if m.group(2) is not None:
            out.append((k, int(m.group(2))))
        else:
            out += [(k, i) for i in range(int(m.group(3)), int(m.group(4)) + 1)]
    t = tok.strip()
    if re.search(r'\bvcc\b', t): out += [('s', 'vcc')]
    if re.search(r'\bexec\b', t): out += [('s', 'exec')]
    if re.search(r'\bm0\b', t): out += [('s', 'm0')]
    return out

def split_ops(s):
    ops, depth, cur = [], 0, ''
    for ch in s:
        if ch in '[(': depth += 1
        if ch in '])': depth -= 1
        if ch == ',' and depth == 0:
            ops.append(cur.strip()); cur = ''
        else:
            cur += ch
    if cur.strip(): ops.append(cur.strip())
    return ops

class I:
    def __init__(self, text, kind=None):
        self.text = text
        self.kind = kind
        self.rd, self.wr = set(), set()
        self.srcA = self.srcB = self.srcC = set()
        self.passes = 0
        self.dpp = False
        self.stdata = set()
        if kind is None: self.parse()
    def parse(self):
        t = self.text.split(';')[0].strip()
        mn, _, rest = t.partition(' ')
        self.mn = mn
        ops = split_ops(rest)
        R = [regs_of(re.sub(r'\b(op_sel|op_sel_hi|neg_lo|neg_hi|quad_perm)\s*:\s*\[[^\]]*\]', '', o)) for o in ops]
        allr = lambda lst: set(x for l in lst for x in l)
        if mn.startswith('v_mfma'):
            self.kind = 'mfma'
            self.passes = 8 if '32x32' in mn else 4
            self.wr = set(R[0]); self.srcA = set(R[1]); self.srcB = set(R[2]); self.srcC = set(R[3])
            self.rd = self.srcA | self.srcB | self.srcC
        elif mn.startswith('v_'):
            if mn.startswith('v_pk_'):
                m_ = re.search(r'op_sel:\[([01,]+)\]', t)
                if m_:
                    o_ = m_.group(1).split(',')
                    assert not (o_[0] == '0' and '1' in o_[1:]), 'unsafe op_sel form: ' + t
            self.kind = 'trans' if any(mn.startswith(x) for x in TRANS) else 'valu'
            self.dpp = ('_dpp' in mn) or ('quad_perm' in t) or ('row_' in t)
            if mn.startswith('v_cmp'):
                self.wr = set(R[0]); self.rd = allr(R[1:])
                if mn.startswith('v_cmpx'): self.wr |= {('s', 'exec')}
            elif mn.startswith('v_permlane') and 'swap' in mn:
                self.wr = allr(R); self.rd = allr(R)
            elif mn.startswith(('v_add_co', 'v_sub_co', 'v_addc_co', 'v_subb_co')):
                self.wr = set(R[0]) | set(R[1]); self.rd = allr(R[2:])
            else:
                self.wr = set(R[0]); self.rd = allr(R[1:])
                if mn.startswith(('v_fmac', 'v_dot2c', 'v_pk_fmac', 'v_writelane')) or 'UNUSED_PRESERVE' in t or self.dpp:
                    self.rd |= set(R[0])
                if mn.startswith('v_cndmask') and len(R) == 3: self.rd |= {('s', 'vcc')}
        elif mn.startswith('ds_'):
            self.kind = 'ds'
            if mn.startswith(('ds_read', 'ds_bpermute', 'ds_permute', 'ds_swizzle')):
                self.wr = set(R[0]); self.rd = allr(R[1:])
            else:
                self.rd = allr(R)
            if 'addtid' in mn: self.rd |= {('s', 'm0')}
        elif mn.startswith(('global_', 'buffer_')):
            self.kind = 'vmem'
            lds = bool(re.search(r'\blds\b', t)) or '_lds_' in mn
            if mn in ('buffer_wbl2', 'buffer_inv'):
                pass
            elif 'load' in mn and not lds:
                self.wr = set(R[0]); self.rd = allr(R[1:])
            else:
                self.rd = allr(R)
                if lds: self.rd |= {('s', 'm0')}
                if 'store' in mn and ('x4' in mn or 'x3' in mn):
                    self.stdata = set(R[0]) if mn.startswith('buffer_') else set(R[1])
        elif mn.startswith(('s_load', 's_memtime', 's_memrealtime', 's_buffer_load')):
            self.kind = 'smem'
            self.wr = set(R[0]); self.rd = allr(R[1:])
        elif mn.startswith(('s_cbranch', 's_branch')):
            self.kind = 'branch'
        elif mn in ('s_waitcnt', 's_barrier', 's_nop', 's_sleep', 's_setprio', 's_endpgm'):
            self.kind = 'misc'
        elif mn.startswith('s_cmp') or mn.startswith('s_bitcmp'):
            self.kind = 'salu'; self.rd = allr(R)
        elif mn.startswith('s_'):
            self.kind = 'salu'
            self.wr = set(R[0]); self.rd = allr(R[1:])
            if 'saveexec' in mn: self.wr |= {('s', 'exec')}; self.rd |= {('s', 'exec')}
        else:
            raise ValueError('unknown instruction: ' + t)

class Wait(I):
    def __init__(self, handles):
        I.__init__(self, 'WAIT', kind='wait')
        self.handles = [h for h in handles if h is not None]

class Stream:
    def __init__(self): self.l = []
    def e(self, text):
        i = I(text); self.l.append(i); return i
    __call__ = e
    def label(self, name):
        self.l.append(I(name + ':', kind='label'))
    def raw(self, text):
        self.l.append(I(text, kind='raw'))
    def wait(self, *hs):
        flat = []
        for h in hs:
            if isinstance(h, (list, tuple)): flat += list(h)
            else: flat.append(h)
        self.l.append(Wait(flat))
    def drain(self, vm=False, lgkm=False):
        w = Wait([]); w.drain_vm = vm; w.drain_lgkm = lgkm; self.l.append(w)
    def ext(self, other):
        self.l += other.l if isinstance(other, Stream) else other
    def mark(self, name):
        self.l.append(I(name, kind='mark'))

def interleave(main, side, after=lambda i: i.kind == 'mfma', per=1, start=0):
    out, si, n = [], 0, 0
    S = side.l
    acc = 0.0
    for ins in main.l:
        out.append(ins)
        if after(ins):
            n += 1
            if n > start:
                acc += per
                while acc >= 1 and si < len(S):
                    while si < len(S) and S[si].kind in ('wait', 'mark'):
                        out.append(S[si]); si += 1
                    if si < len(S):
                        out.append(S[si]); si += 1
                    acc -= 1
    out += S[si:]
    r = Stream(); r.l = out
    return r

def resolve_waits(L):
    out = []
    vm, lg = [], []
    smem_pending = False
    for ins in L:
        if ins.kind == 'wait':
            nv = nl = None
            if getattr(ins, 'drain_vm', False): nv = 0
            if getattr(ins, 'drain_lgkm', False): nl = 0
            for h in ins.handles:
                if h.kind == 'vmem' and h in vm:
                    n = len(vm) - 1 - vm.index(h)
                    nv = n if nv is None else min(nv, n)
                elif h.kind in ('ds', 'smem') and h in lg:
                    n = 0 if any(x.kind == 'smem' for x in lg) else len(lg) - 1 - lg.index(h)
                    nl = n if nl is None else min(nl, n)
            parts = []
            if nv is not None:
                nv = min(nv, 63)
                parts.append(f'vmcnt({nv})'); vm = vm[len(vm) - nv:] if nv else []
            if nl is not None:
                nl = min(nl, 15)
                parts.append(f'lgkmcnt({nl})'); lg = lg[len(lg) - nl:] if nl else []
            if parts: out.append(I('s_waitcnt ' + ' '.join(parts)))
            continue
        if ins.kind == 'mark': continue
        if ins.kind == 'vmem': vm.append(ins)
        if ins.kind in ('ds', 'smem'): lg.append(ins)
        if ins.kind not in ('label', 'raw'):
            for q in vm + lg:
                if q is ins: continue
                if q.wr & (ins.rd | ins.wr):
                    raise RuntimeError(f'unwaited load: {q.text}  ->  {ins.text}')
        if ins.kind == 'misc' and ins.text.startswith('s_waitcnt'):
            m = re.search(r'vmcnt\((\d+)\)', ins.text)
            if m: n = int(m.group(1)); vm = vm[len(vm) - n:] if n else []
            m = re.search(r'lgkmcnt\((\d+)\)', ins.text)
            if m: n = int(m.group(1)); lg = lg[len(lg) - n:] if n else []
        out.append(ins)
    return out

def need(p, c):
    n = 0
    isv = lambda x: x.kind in ('valu', 'trans')
    vw = {r for r in p.wr if r[0] in 'va'}
    sw = {r for r in p.wr if r[0] == 's'}
    if isv(p):
        dot = p.mn.startswith('v_dot')
        if c.kind == 'mfma' and vw & c.rd: n = max(n, 3 if dot else 2)
        if c.kind == 'mfma' and ('s', 'exec') in sw: n = max(n, 4)
        if isv(c):
            if p.kind == 'trans' and vw & c.rd: n = max(n, 1)
            if c.dpp and vw & c.rd: n = max(n, 2)
            if c.dpp and ('s', 'exec') in sw: n = max(n, 5)
            if c.mn.startswith('v_permlane') and vw & c.rd: n = max(n, 2)
            if c.mn.startswith(('v_readlane', 'v_readfirstlane')) and vw & c.rd: n = max(n, 1)
            if c.mn.startswith(('v_readlane', 'v_readfirstlane', 'v_writelane', 'v_permlane')) and ('s', 'exec') in sw: n = max(n, 4)
            if sw & c.rd: n = max(n, 4 if c.mn.startswith(('v_readlane', 'v_writelane')) else 2)
            if ('sdwa' in p.mn or ('op_sel' in p.text and not p.mn.startswith('v_pk'))) and vw & (c.rd | c.wr): n = max(n, 1)
            if dot and vw & (c.rd | c.wr):
                same = c.mn == p.mn and not (vw & (c.rd - c.wr))
                if not same: n = max(n, 3)
        if dot and c.kind in ('vmem', 'ds') and vw & c.rd: n = max(n, 3)
        if c.kind == 'vmem' and sw & c.rd: n = max(n, 5)
        if c.kind in ('salu', 'branch') and (sw & c.rd or (c.kind == 'branch' and sw)): n = max(n, 4 if c.kind == 'salu' else 5)
    if p.kind == 'salu' and ('s', 'm0') in p.wr and ('s', 'm0') in c.rd and c.kind in ('vmem', 'ds'): n = max(n, 1)
    if p.kind == 'mfma':
        P = p.passes
        big = {4: 8, 8: 12}[P]
        if c.kind == 'mfma':
            if p.wr & (c.srcA | c.srcB): n = max(n, big)
            if p.wr & c.srcC and not (p.wr == c.srcC and p.passes == c.passes): n = max(n, {4: 6, 8: 10}[P])
            if p.wr & c.wr and not (p.wr == c.srcC and p.passes == c.passes): n = max(n, {4: 6, 8: 10}[P])
        elif c.kind in ('valu', 'trans', 'vmem', 'ds'):
            if p.wr & (c.rd | c.wr): n = max(n, big)
            if isv(c) and p.srcC & c.wr: n = max(n, {4: 3, 8: 7}[P])
    if p.kind == 'vmem' and p.stdata and (p.stdata & c.wr): n = max(n, 2)
    return n

def states(i):
    if i.kind in ('label', 'raw'): return 0
    if i.text.startswith('s_nop'): return int(i.text.split()[1]) + 1
    return 1

def worst(p):
    if p.kind == 'mfma': return {4: 8, 8: 12}[p.passes]
    if p.kind in ('valu', 'trans'):
        return 5 if any(r[0] == 's' for r in p.wr) else (3 if p.mn.startswith('v_dot') else 2)
    if p.kind == 'vmem' and p.stdata: return 2
    if p.kind == 'salu' and ('s', 'm0') in p.wr: return 1
    return 0

def insert_nops(L):
    out = []
    for c in L:
        if c.kind == 'raw':
            out.append(c); continue
        req, dist = 0, 0
        for p in reversed(out[-24:]):
            if c.kind in ('branch', 'label'):
                w = worst(p) - (1 if c.kind == 'branch' else 0) if p.kind not in ('label', 'raw') else 0
                if c.kind == 'branch' and p.kind not in ('label', 'raw'): w = max(w, need(p, c))
                req = max(req, w - dist)
            elif p.kind not in ('label', 'raw'):
                req = max(req, need(p, c) - dist)
            dist += states(p)
            if dist >= 20: break
        while req > 0:
            k = min(req, 16)
            out.append(I(f's_nop {k-1}')); req -= k
        out.append(c)
    return out

def finish(stream):
    L = insert_nops(resolve_waits(stream.l))
    return L

def render(L):
    return '\n'.join((i.text if i.kind in ('label', 'raw') else '    ' + i.text) for i in L)
```

```python
import sys, os, struct
import numpy as np
from fw import *

NAME = 'recurrent_scan__ssm_conv_s4d__dense_activation_mish__prompt_kernel'
STAMPS = int(os.environ.get('STAMPS', '0'))
VAR = os.environ.get('VAR', 'sep')

WS_EPOCH = 0x0
WS_F1 = 0x400
WS_F2 = 0x800
WS_F3 = 0xC00
WS_STATS = 0x2000
WS_STAMP = 0x10000
WS_XNB = 0x100000
WS_W2F = 0x300000
WS_ST = 0x500000
WS_ACT = 0x700000
WS_SIZE = 0x1000000
SLOT = 32768
SIDE = 3 * SLOT
ROWS = 528
CHS = 53 * ROWS
L_T = SIDE + 57344
TCH = 32 * 48 + 16
L_TZ = 32 * 48
L_LN = SIDE + 57344
CS = 4160
L_KC = SIDE
L_U = SIDE + 8 * CS
US = 480 + 4096
L_CRED = 0
L_P = 0
L_ST = 131072 + 16384
LDS_BYTES = 163840

def f32(x): return '0x%08x' % struct.unpack('<I', struct.pack('<f', x))[0]
LOG2E = 1.4426950408889634
INV2PI = 0.15915494309189535

sX, sLA, sAI, sCR, sCI, sDT, sDS = 's[4:5]', 's[6:7]', 's[8:9]', 's[10:11]', 's[12:13]', 's[14:15]', 's[16:17]'
sOUT, sWS = 's[26:27]', 's[30:31]'
rX, rW1, rWS, rWSO, rW2, rB1 = 's[36:39]', 's[40:43]', 's[44:47]', 's[48:51]', 's[52:55]', 's[56:59]'
S_XCD, S_J, S_Q, S_RB, S_CB, S_RB2, S_NB, S_W, S_K0, S_M0B = 's60', 's61', 's62', 's63', 's64', 's65', 's66', 's67', 's68', 's69'
S_T0, S_T1, S_T2, S_T3, S_CNT, S_ONES = 's70', 's71', 's72', 's73', 's74', 's75'
S_SOFF = 76
V = lambda a, n=1: (f'v{a}' if n == 1 else f'v[{a}:{a+n-1}]')

tail = []
nstamp = [0]
def stamp(s):
    if not STAMPS: return
    k = nstamp[0]; nstamp[0] += 1
    h = s('s_memrealtime s[90:91]')
    s.wait(h)
    s(f'v_writelane_b32 v14, s90, {k}')
    s(f'v_writelane_b32 v15, s91, {k}')

npoll = [0]
def poll(s, off, nreg, vtmp, voff, lanes_cond=None, pre=None):
    k = npoll[0]; npoll[0] += 1
    ld = f'global_load_dword{"x4" if nreg == 4 else ""} {V(vtmp, nreg)}, {voff}, {sWS} offset:{off} sc1'
    def chk(e):
        if nreg == 4:
            e(f'v_xor_b32 v{vtmp}, v{vtmp}, v2'); e(f'v_xor_b32 v{vtmp+1}, v{vtmp+1}, v2')
            e(f'v_xor_b32 v{vtmp+2}, v{vtmp+2}, v2'); e(f'v_xor_b32 v{vtmp+3}, v{vtmp+3}, v2')
            e(f'v_or3_b32 v{vtmp}, v{vtmp}, v{vtmp+1}, v{vtmp+2}')
            e(f'v_or_b32 v{vtmp}, v{vtmp}, v{vtmp+3}')
            e(f'v_cmp_ne_u32 vcc, 0, v{vtmp}')
        else:
            e(f'v_cmp_ne_u32 vcc, v{vtmp}, v2')
    h = pre if pre is not None else s(ld)
    s.wait(h)
    chk(s)
    s(f's_cbranch_vccnz Lretry{k}')
    s.label(f'Ldone{k}')
    t = [f'Lretry{k}:', f's_mov_b32 {S_CNT}, 0', f'Lspin{k}:', 's_sleep 1', ld, 's_waitcnt vmcnt(0)']
    chk(t.append)
    t += ['s_nop 4', f's_cbranch_vccz Ldone{k}', f's_add_u32 {S_CNT}, {S_CNT}, 1', f's_cmp_lt_u32 {S_CNT}, 0x40000',
          f's_cbranch_scc1 Lspin{k}', f's_branch Ldone{k}']
    tail.extend(t)
    return ld

def wave_sum(s, v, t):
    s(f'v_add_f32_dpp v{v}, v{v}, v{v} quad_perm:[1,0,3,2] row_mask:0xf bank_mask:0xf')
    s(f'v_add_f32_dpp v{v}, v{v}, v{v} quad_perm:[2,3,0,1] row_mask:0xf bank_mask:0xf')
    s(f'v_add_f32_dpp v{v}, v{v}, v{v} row_half_mirror row_mask:0xf bank_mask:0xf')
    s(f'v_add_f32_dpp v{v}, v{v}, v{v} row_mirror row_mask:0xf bank_mask:0xf')
    s(f'v_mov_b32 v{t}, v{v}')
    s(f'v_permlane16_swap_b32 v{v}, v{t}')
    s(f'v_add_f32 v{v}, v{v}, v{t}')
    s(f'v_mov_b32 v{t}, v{v}')
    s(f'v_permlane32_swap_b32 v{v}, v{t}')
    s(f'v_add_f32 v{v}, v{v}, v{t}')

def rb(s, v):
    s(f'v_cvt_pk_bf16_f32 v{v}, v{v}, v{v}')
    s(f'v_lshlrev_b32 v{v}, 16, v{v}')

def cmul(s, d, a, b):
    s(f'v_pk_mul_f32 {V(d,2)}, {V(a,2)}, {V(b,2)} op_sel_hi:[1,0]')
    s(f'v_pk_fma_f32 {V(d,2)}, {V(a,2)}, {V(b,2)}, {V(d,2)} op_sel:[1,1,0] op_sel_hi:[0,1,1] neg_lo:[1,0,0]')

def anchor(s, d, zr, zi, p, t):
    s(f'v_mul_f32 v{t}, {f32(float(p))}, v{zr}')
    s(f'v_mul_f32 v{t+1}, {f32(float(p))}, v{zi}')
    s(f'v_exp_f32 v{t}, v{t}')
    s(f'v_fract_f32 v{t+1}, v{t+1}')
    s(f'v_cos_f32 v{d}, v{t+1}')
    s(f'v_sin_f32 v{d+1}, v{t+1}')
    s(f'v_pk_mul_f32 {V(d,2)}, {V(d,2)}, {V(t,2)} op_sel_hi:[1,0]')

ASET = list(range(8)) + [256 + 2*i for i in range(4)] + [512, 516, 768, 772] + [1024 + 256*j for j in range(4)] + [2048]
def bf16_round_int(l):
    u = struct.unpack('<I', struct.pack('<f', float(l)))[0]
    u = (u + 0x7FFF + ((u >> 16) & 1)) & 0xFFFF0000
    return int(struct.unpack('<f', struct.pack('<I', u))[0])
def offsets_table():
    tab = {}
    for ia, a in enumerate(ASET):
        for b in range(32):
            tab.setdefault(a + 8*b, (ia, b))
    out = []
    for x in range(2048 + 8):
        l = 2047 - x
        if l < 0: out.append(None); continue
        ia, b = tab[bf16_round_int(l)]
        out.append(b * 48 + ia * 2)
    return out

def build():
    s = Stream()
    if STAMPS:
        s('v_mov_b32 v14, 0'); s('v_mov_b32 v15, 0')
        stamp(s)
    k0 = s('s_load_dwordx16 s[4:19], s[0:1], 0')
    k1 = s('s_load_dwordx8 s[20:27], s[0:1], 64')
    k2 = s('s_load_dwordx4 s[28:31], s[0:1], 96')
    s('s_cmp_ge_u32 s2, 256')
    s('s_cbranch_scc1 Lend')
    s(f's_and_b32 {S_XCD}, s2, 7')
    s(f's_lshr_b32 {S_J}, s2, 3')
    s(f's_lshl_b32 {S_Q}, {S_XCD}, 5')
    s(f's_add_u32 {S_Q}, {S_Q}, {S_J}')
    s(f's_and_b32 {S_T0}, {S_J}, 1')
    s(f's_lshl_b32 {S_RB}, {S_XCD}, 1')
    s(f's_add_u32 {S_RB}, {S_RB}, {S_T0}')
    s(f's_lshr_b32 {S_CB}, {S_J}, 1')
    s(f's_lshl_b32 {S_K0}, {S_T0}, 2')
    s(f's_add_u32 {S_K0}, {S_K0}, {S_CB}')
    s(f's_and_b32 {S_T0}, {S_J}, 3')
    s(f's_lshl_b32 {S_RB2}, {S_XCD}, 2')
    s(f's_add_u32 {S_RB2}, {S_RB2}, {S_T0}')
    s(f's_lshr_b32 {S_NB}, {S_J}, 2')
    s('v_lshrrev_b32 v4, 6, v0')
    s('v_and_b32 v1, 63, v0')
    s(f'v_readfirstlane_b32 {S_W}, v4')
    s('v_lshlrev_b32 v3, 4, v1')
    s(f's_mov_b32 {S_ONES}, 0x3f803f80')
    s(f's_lshl_b32 {S_T0}, {S_Q}, 13')
    s(f'v_lshl_add_u32 v80, v0, 4, {S_T0}')
    s(f's_lshl_b32 {S_T1}, {S_Q}, 9')
    s('v_and_b32 v81, 255, v0')
    s(f'v_lshl_add_u32 v81, v81, 1, {S_T1}')
    s('v_bfe_u32 v82, v0, 7, 1')
    s(f's_lshl_b32 {S_T2}, {S_Q}, 2')
    s(f'v_lshl_add_u32 v82, v82, 1, {S_T2}')
    s('v_mov_b32 v83, 0')
    s.wait(k0, k1, k2)
    hLN = s(f'global_load_dwordx4 v[84:87], v80, {sX}')
    hEP = s(f'global_load_dword v2, v83, {sWS} offset:{WS_EPOCH}')
    hP = [s(f'global_load_ushort v88, v81, {sLA}'), s(f'global_load_ushort v89, v81, {sAI}'),
          s(f'global_load_ushort v90, v81, {sCR}'), s(f'global_load_ushort v91, v81, {sCI}'),
          s(f'global_load_ushort v92, v82, {sDT}')]
    s(f's_cmp_lt_u32 {S_J}, 28')
    s(f's_cselect_b32 s38, 0x20000, 0')
    s(f's_cselect_b32 s50, {WS_SIZE}, 0')
    s(f's_cselect_b32 s54, {1792*1024}, 0')
    s(f's_cselect_b32 {S_T3}, 1, 0')
    s(f's_lshl_b32 {S_T0}, {S_RB}, 17')
    s(f's_add_u32 s36, s4, {S_T0}'); s('s_addc_u32 s37, s5, 0'); s('s_mov_b32 s39, 0x20000')
    s(f's_lshl_b32 {S_T0}, {S_CB}, 8')
    s(f's_sub_u32 s42, {512*3584 + 2048}, {S_T0}')
    s(f's_mul_i32 s42, s42, {S_T3}')
    s(f's_add_u32 s40, s20, {S_T0}'); s('s_addc_u32 s41, s21, 0')
    s('s_sub_u32 s40, s40, 2048'); s('s_subb_u32 s41, s41, 0'); s('s_mov_b32 s43, 0x20000')
    s('s_mov_b32 s44, s30'); s('s_mov_b32 s45, s31'); s(f's_mov_b32 s46, {WS_SIZE}'); s('s_mov_b32 s47, 0x20000')
    s('s_mov_b32 s48, s30'); s('s_mov_b32 s49, s31'); s('s_mov_b32 s51, 0x20000')
    s('s_mov_b32 s52, s24'); s('s_mov_b32 s53, s25'); s('s_mov_b32 s55, 0x20000')
    s('s_mov_b32 s56, s22'); s('s_mov_b32 s57, s23'); s('s_mov_b32 s58, 3584'); s('s_mov_b32 s59, 0x20000')
    s('v_lshrrev_b32 v8, 3, v1')
    s('v_lshrrev_b32 v9, 4, v1')
    s('v_and_b32 v10, 7, v1')
    s('v_xor_b32 v10, v10, v9')
    s(f's_lshl_b32 {S_T0}, {S_W}, 14')
    s(f'v_lshl_add_u32 v4, v8, 10, {S_T0}')
    s('v_lshl_add_u32 v4, v10, 4, v4')
    s('v_xor_b32 v5, 64, v4')
    s(f'v_add_u32 v5, {8192 - 1024}, v5')
    s(f's_lshl_b32 {S_T0}, {S_W}, 3')
    s(f'v_add_u32 v6, {S_T0}, v9')
    s('v_mul_u32_u24 v6, 3584, v6')
    s('v_and_b32 v10, 15, v1')
    s('v_lshlrev_b32 v11, 2, v9')
    s('v_xor_b32 v10, v10, v11')
    s('v_lshl_add_u32 v6, v10, 4, v6')
    s(f'v_add_u32 v7, {4*3584 - 1024}, v6')
    s(f's_lshl_b32 {S_M0B}, {S_W}, 12')
    dma = {}
    def issue_dma(st, i):
        st(f's_add_u32 {S_T0}, {S_K0}, {i}')
        st(f's_and_b32 {S_T0}, {S_T0}, 7')
        st(f's_lshl_b32 {S_T1}, {S_T0}, 7')
        st(f's_mul_i32 {S_T2}, {S_T0}, {64*3584}')
        st(f's_add_u32 m0, {S_M0B}, {(i % 3) * SLOT}')
        dma[i] = [st(f'buffer_load_dwordx4 v4, {rX}, {S_T1} offen lds'),
                  st(f'buffer_load_dwordx4 v5, {rX}, {S_T1} offen offset:1024 lds'),
                  st(f'buffer_load_dwordx4 v6, {rW1}, {S_T2} offen offset:2048 lds'),
                  st(f'buffer_load_dwordx4 v7, {rW1}, {S_T2} offen offset:3072 lds')]
    issue_dma(s, 0)
    s(f's_mul_i32 {S_T0}, {S_XCD}, 28')
    s(f's_add_u32 {S_T0}, {S_T0}, {S_J}')
    s(f's_lshr_b32 {S_T1}, {S_T0}, 1')
    s(f's_and_b32 {S_T0}, {S_T0}, 1')
    s(f's_lshl_b32 {S_T0}, {S_T0}, 3')
    s(f's_add_u32 {S_T0}, {S_T0}, {S_W}')
    s(f's_lshl_b32 {S_T2}, {S_T1}, 14')
    s(f's_lshl_b32 {S_T3}, {S_T0}, 6')
    s(f's_add_u32 {S_T2}, {S_T2}, {S_T3}')
    s('v_lshrrev_b32 v8, 5, v1')
    s('v_and_b32 v9, 31, v1')
    s('v_lshlrev_b32 v10, 12, v8')
    s('v_lshl_add_u32 v10, v9, 1, v10')
    s(f's_add_u32 {S_T3}, {S_T2}, 8192')
    hW2 = []
    for e_ in range(8):
        hW2.append(s(f'buffer_load_ushort v{96+e_}, v10, {rW2}, {S_T2 if e_ < 4 else S_T3} offen offset:{(e_ % 4) * 1024}'))
    s(f's_lshr_b32 {S_T2}, {S_T0}, 1')
    s(f's_mul_i32 {S_T2}, {S_T2}, 112')
    s(f's_add_u32 {S_T2}, {S_T2}, {S_T1}')
    s(f's_lshl_b32 {S_T2}, {S_T2}, 1')
    s(f's_and_b32 {S_T0}, {S_T0}, 1')
    s(f's_add_u32 {S_T2}, {S_T2}, {S_T0}')
    s(f's_lshl_b32 {S_T2}, {S_T2}, 10')
    s(f's_add_u32 s32, {S_T2}, {WS_W2F}')
    s('s_getpc_b64 s[34:35]')
    s.label('Lpc')
    s('s_add_u32 s18, s34, Ltab-Lpc')
    s('s_addc_u32 s19, s35, 0')
    s('v_and_b32 v11, 255, v0')
    s('v_lshlrev_b32 v11, 4, v11')
    hT = [s('global_load_dwordx4 v[104:107], v11, s[18:19]'), s('global_load_dwordx2 v[108:109], v11, s[18:19] offset:16')]
    s('v_lshlrev_b32 v11, 6, v0')
    s('v_min_u32 v11, Ltab-Lpc, v11')
    hPF = s('global_load_dword v110, v11, s[34:35]')
    s(f's_and_b32 {S_T0}, {S_W}, 3')
    s(f's_lshl_b32 {S_T0}, {S_T0}, 6')
    s(f's_lshl_b32 {S_T1}, {S_CB}, 8')
    s(f's_add_u32 {S_T0}, {S_T0}, {S_T1}')
    s('v_lshlrev_b32 v11, 1, v9')
    hB1 = s(f'buffer_load_ushort v12, v11, {rB1}, {S_T0} offen')
    s('v_lshrrev_b32 v11, 8, v0')
    s(f's_lshl_b32 {S_T2}, {S_Q}, 2')
    s(f'v_lshl_add_u32 v11, v11, 1, {S_T2}')
    hDS = s(f'global_load_ushort v13, v11, {sDS}')
    issue_dma(s, 1)
    issue_dma(s, 2)
    stamp(s)
    s.wait(hLN)
    stamp(s)
    F = 112
    for i in range(4):
        s(f'v_lshlrev_b32 v{F+2*i}, 16, v{84+i}')
        s(f'v_and_b32 v{F+2*i+1}, 0xffff0000, v{84+i}')
    s(f'v_pk_add_f32 v[120:121], v[{F}:{F+1}], v[{F+2}:{F+3}]')
    s(f'v_pk_add_f32 v[122:123], v[{F+4}:{F+5}], v[{F+6}:{F+7}]')
    s('v_pk_add_f32 v[120:121], v[120:121], v[122:123]')
    s('v_add_f32 v120, v120, v121')
    wave_sum(s, 120, 121)
    s(f'v_mul_f32 v120, {f32(1/512)}, v120')
    for i in range(4):
        s(f'v_pk_add_f32 v[{124+2*i}:{125+2*i}], v[{F+2*i}:{F+2*i+1}], v[120:121] op_sel_hi:[1,0] neg_lo:[0,1] neg_hi:[0,1]')
    s('v_pk_mul_f32 v[122:123], v[124:125], v[124:125]')
    for i in range(1, 4):
        s(f'v_pk_fma_f32 v[122:123], v[{124+2*i}:{125+2*i}], v[{124+2*i}:{125+2*i}], v[122:123]')
    s('v_add_f32 v122, v122, v123')
    wave_sum(s, 122, 123)
    s(f'v_mul_f32 v122, {f32(1/512)}, v122')
    rb(s, 120); rb(s, 122)
    s(f'v_add_f32 v122, {f32(1e-5)}, v122')
    rb(s, 122)
    s('v_sqrt_f32 v122, v122')
    rb(s, 122)
    s('v_cvt_pk_bf16_f32 v132, v120, v122')
    s('v_rcp_f32 v122, v122')
    for i in range(4):
        s(f'v_pk_add_f32 v[{124+2*i}:{125+2*i}], v[{F+2*i}:{F+2*i+1}], v[120:121] op_sel_hi:[1,0] neg_lo:[0,1] neg_hi:[0,1]')
    for i in range(4):
        s(f'v_cvt_pk_bf16_f32 v{84+i}, v{124+2*i}, v{125+2*i}')
    for i in range(4):
        s(f'v_lshlrev_b32 v{F+2*i}, 16, v{84+i}')
        s(f'v_and_b32 v{F+2*i+1}, 0xffff0000, v{84+i}')
    for i in range(4):
        s(f'v_pk_mul_f32 v[{F+2*i}:{F+2*i+1}], v[{F+2*i}:{F+2*i+1}], v[122:123] op_sel_hi:[1,0]')
    for i in range(4):
        s(f'v_cvt_pk_bf16_f32 v{84+i}, v{F+2*i}, v{F+2*i+1}')
    s('v_lshlrev_b32 v11, 4, v0')
    s(f'v_add_u32 v11, {L_LN}, v11')
    w_ = s('ds_write_b128 v11, v[84:87]')
    s(f's_lshl_b32 {S_T0}, {S_Q}, 3')
    s(f's_add_u32 {S_T0}, {S_T0}, {S_W}')
    s(f's_lshl_b32 {S_T0}, {S_T0}, 2')
    s(f's_add_u32 {S_T0}, {S_T0}, {WS_STATS}')
    pub1 = [s(f'buffer_store_dword v132, v83, {rWS}, {S_T0} offen sc1')]
    s('v_bfe_u32 v120, v0, 2, 2')
    s('v_lshlrev_b32 v120, 10, v120')
    s('v_and_b32 v121, 3, v0')
    s('v_lshl_add_u32 v120, v121, 3, v120')
    s('v_lshrrev_b32 v121, 4, v0')
    s('v_lshl_add_u32 v120, v121, 5, v120')
    s(f'v_add_u32 v120, {L_LN}, v120')
    s.wait(w_)
    s('s_barrier')
    r0 = s('ds_read_b64_tr_b16 v[84:85], v120')
    r1 = s('ds_read_b64_tr_b16 v[86:87], v120 offset:4096')
    s.wait(hW2)
    for i in range(4):
        s(f'v_lshl_or_b32 v{124+i}, v{97+2*i}, 16, v{96+2*i}')
    pub1.append(s(f'buffer_store_dwordx4 v[124:127], v3, {rWSO}, s32 offen sc1'))
    s(f's_mov_b32 {S_T0}, {WS_XNB}')
    s.wait(r0, r1)
    pub1.append(s(f'buffer_store_dwordx4 v[84:87], v80, {rWS}, {S_T0} offen sc1'))
    stamp(s)
    s.wait(hEP)
    s(f's_mov_b32 {S_T0}, 0x9E3779B1')
    s(f'v_mul_lo_u32 v2, v2, {S_T0}')
    s('v_add_u32 v2, 0x3C6EF35F, v2')
    s.wait(hP)
    for i in range(5): s(f'v_lshlrev_b32 v{88+i}, 16, v{88+i}')
    s(f'v_mul_f32 v88, {f32(LOG2E)}, v88')
    s(f'v_mul_f32 v92, {f32(LOG2E)}, v92')
    s('v_exp_f32 v88, v88')
    s('v_exp_f32 v92, v92')
    rb(s, 88); rb(s, 92)
    s('v_mul_f32 v88, v88, v92')
    s('v_mul_f32 v89, v89, v92')
    s(f'v_mul_f32 v88, {f32(-LOG2E)}, v88')
    s(f'v_mul_f32 v89, {f32(INV2PI)}, v89')
    s('v_bfe_u32 v93, v0, 7, 1')
    s(f'v_mul_u32_u24 v93, {CHS}, v93')
    s('v_and_b32 v94, 127, v0')
    s('v_lshl_add_u32 v93, v94, 2, v93')
    s(f'v_add_u32 v93, {SIDE}, v93')
    s(f's_cmp_ge_u32 {S_W}, 4')
    s('s_cbranch_scc1 LroleA')
    pk = [0]
    def put(row, c):
        t = 136 + (pk[0] % 4); pk[0] += 1
        s(f'v_cvt_pk_bf16_f32 v{t}, v{c}, v{c+1}')
        s(f'ds_write_b32 v93, v{t} offset:{row * ROWS}')
    P = lambda i: 144 + 2*i
    Q = lambda j: 160 + 2*j
    TMP = 168
    anchor(s, P(1), 88, 89, 8, 94)
    anchor(s, Q(1), 88, 89, 64, 94)
    s(f'v_mov_b32 v{P(0)}, 1.0'); s(f'v_mov_b32 v{P(0)+1}, 0')
    put(21, P(0)); put(22, P(1))
    for d, a, b_ in [(2,1,1), (3,2,1), (4,2,2), (5,4,1), (6,4,2), (7,4,3)]:
        cmul(s, P(d), P(a), P(b_)); put(21 + d, P(d))
    cmul(s, Q(2), Q(1), Q(1)); cmul(s, Q(3), Q(2), Q(1))
    for j in range(1, 4):
        put(21 + 8*j, Q(j))
        for i in range(1, 8):
            t = TMP + 2 * (i % 4)
            cmul(s, t, P(i), Q(j)); put(21 + 8*j + i, t)
    s('s_branch LroleJ')
    s.label('LroleA')
    s('v_xor_b32 v89, 0x80000000, v89')
    s(f'v_mov_b32 v{P(0)}, v90')
    s(f'v_xor_b32 v{P(0)+1}, 0x80000000, v91')
    anchor(s, Q(0), 88, 89, 1, 94)
    anchor(s, Q(1), 88, 89, 256, 94)
    anchor(s, 176, 88, 89, 1024, 94)
    put(0, P(0))
    for i in range(1, 8):
        cmul(s, P(i), P(i-1), Q(0)); put(i, P(i))
    cmul(s, Q(2), Q(1), Q(1)); cmul(s, Q(3), Q(2), Q(1))
    n_ = 0
    for row, a, qq in [(8,0,1), (9,2,1), (10,4,1), (11,6,1), (12,0,2), (13,4,2), (14,0,3), (15,4,3)]:
        t = TMP + 2 * (n_ % 4); n_ += 1
        cmul(s, t, P(a), Q(qq)); put(row, t)
    cmul(s, 178, P(0), 176); put(16, 178)
    for row, qq in [(17, Q(1)), (18, Q(2)), (19, Q(3)), (20, 176)]:
        t = TMP + 2 * (n_ % 4); n_ += 1
        cmul(s, t, 178, qq); put(row, t)
    s.label('LroleJ')
    s('v_and_b32 v94, 15, v1')
    s(f'v_mul_u32_u24 v95, {ROWS}, v94')
    s('v_lshrrev_b32 v96, 4, v1')
    s('v_lshl_add_u32 v95, v96, 4, v95')
    s(f's_lshr_b32 {S_T0}, {S_W}, 2')
    s(f's_mul_i32 {S_T1}, {S_T0}, {CHS}')
    s(f's_add_u32 {S_T1}, {S_T1}, {SIDE}')
    s(f's_bfe_u32 {S_T2}, {S_W}, 0x10001')
    s(f's_mul_i32 {S_T2}, {S_T2}, {16*ROWS}')
    s(f's_add_u32 {S_T2}, {S_T2}, {S_T1}')
    s(f'v_add_u32 v97, {S_T2}, v95')
    s(f's_and_b32 {S_T2}, {S_W}, 1')
    s(f's_mul_i32 {S_T2}, {S_T2}, {16*ROWS}')
    s(f's_add_u32 {S_T2}, {S_T2}, {S_T1}')
    s(f's_add_u32 {S_T2}, {S_T2}, {21*ROWS}')
    s(f'v_add_u32 v98, {S_T2}, v95')
    s('v_bfe_u32 v99, v0, 7, 1')
    s('v_lshlrev_b32 v99, 2, v99')
    s(f'v_add_u32 v99, {SIDE + 56000}, v99')
    s('ds_write_b32 v99, v92')
    s.drain(lgkm=True)
    s('s_barrier')
    stamp(s)
    s(f's_lshl_b32 {S_T1}, {S_T0}, 2')
    s(f's_add_u32 {S_T1}, {S_T1}, {SIDE + 56000}')
    s(f'v_mov_b32 v99, {S_T1}')
    hdt = s('ds_read_b32 v92, v99')
    hA = [s(f'ds_read_b128 v[{144+4*k}:{147+4*k}], v97 offset:{64*k}') for k in range(8)]
    hB = [s(f'ds_read_b128 v[{176+4*k}:{179+4*k}], v98 offset:{64*k}') for k in range(8)]
    for k in range(8):
        s.wait(hA[k], hB[k])
        s(f'v_mfma_f32_16x16x32_bf16 v[100:103], v[{144+4*k}:{147+4*k}], v[{176+4*k}:{179+4*k}], {"0" if k == 0 else "v[100:103]"}')
    s(f's_mul_i32 {S_T1}, {S_T0}, {TCH}')
    s(f's_and_b32 {S_T2}, {S_W}, 1')
    s(f's_mul_i32 {S_T2}, {S_T2}, {16*48}')
    s(f's_add_u32 {S_T1}, {S_T1}, {S_T2}')
    s(f's_bfe_u32 {S_T2}, {S_W}, 0x10001')
    s(f's_lshl_b32 {S_T3}, {S_T2}, 5')
    s(f's_add_u32 {S_T1}, {S_T1}, {S_T3}')
    s(f's_add_u32 {S_T1}, {S_T1}, {L_T}')
    s('v_mul_u32_u24 v95, 48, v94')
    s('v_lshl_add_u32 v95, v96, 3, v95')
    s(f'v_add_u32 v95, {S_T1}, v95')
    s(f's_lshl_b32 {S_T2}, {S_T2}, 2')
    s(f'v_add_u32 v97, {S_T2}, v96')
    s('v_cmp_gt_u32 vcc, 6, v97')
    s(f'v_mov_b32 v97, {L_T + L_TZ + 8}')
    s('v_cndmask_b32 v95, v97, v95, vcc')
    s('v_add_f32 v92, v92, v92')
    s('v_pk_mul_f32 v[100:101], v[100:101], v[92:93] op_sel_hi:[1,0]')
    s('v_pk_mul_f32 v[102:103], v[102:103], v[92:93] op_sel_hi:[1,0]')
    s('v_cvt_pk_bf16_f32 v100, v100, v101')
    s('v_cvt_pk_bf16_f32 v101, v102, v103')
    s('ds_write_b64 v95, v[100:101]')
    s('v_and_b32 v97, 1, v1')
    s(f'v_mul_u32_u24 v97, {TCH}, v97')
    s(f'v_add_u32 v97, {L_T + L_TZ}, v97')
    s('ds_write_b32 v97, v83')
    s.wait(pub1)
    s.drain(lgkm=True)
    s('s_barrier')
    s(f's_lshl_b32 {S_T1}, {S_Q}, 2')
    s(f's_add_u32 {S_T1}, {S_T1}, {WS_F1}')
    s(f's_cmp_lg_u32 {S_W}, 0')
    s(f's_cselect_b32 {S_T1}, {WS_SIZE}, {S_T1}')
    s(f'buffer_store_dword v2, v83, {rWS}, {S_T1} offen sc1')
    stamp(s)
    s.wait(hT)
    s('v_lshrrev_b32 v94, 8, v0')
    s(f'v_mul_u32_u24 v95, {TCH}, v94')
    s(f'v_add_u32 v95, {L_T}, v95')
    G = 144
    hg = []
    for i in range(11):
        src = 104 + i // 2
        s(f'v_add_u32_sdwa v{G+i}, v{src}, v95 dst_sel:DWORD dst_unused:UNUSED_PAD src0_sel:WORD_{i%2} src1_sel:DWORD')
        hg.append(s(f'ds_read_u16 v{G+i}, v{G+i}'))
    s(f'v_mul_u32_u24 v95, {4*CS}, v94')
    s('v_and_b32 v96, 255, v0')
    s('v_lshl_add_u32 v95, v96, 4, v95')
    s(f'v_add_u32 v95, {L_KC}, v95')
    s.wait(hg)
    for c in range(4):
        for k in range(4):
            s(f'v_lshl_or_b32 v{160+4*c+k}, v{G+c+2*k+1}, 16, v{G+c+2*k}')
        s(f'ds_write_b128 v95, v[{160+4*c}:{163+4*c}] offset:{c*CS}')
    s('v_mov_b32 v100, 0'); s('v_mov_b32 v101, 0'); s('v_mov_b32 v102, 0'); s('v_mov_b32 v103, 0')
    s('v_lshrrev_b32 v96, 2, v1')
    s('v_and_b32 v96, 7, v96')
    s(f'v_mul_u32_u24 v96, {CS}, v96')
    s('v_and_b32 v97, 3, v1')
    s('v_lshl_add_u32 v96, v97, 4, v96')
    s(f'v_add_u32 v96, {L_KC + 4096}, v96')
    s('ds_write_b128 v96, v[100:103]')
    s('v_lshrrev_b32 v96, 5, v1')
    s(f'v_mul_u32_u24 v96, {US}, v96')
    s('v_and_b32 v97, 31, v1')
    s('v_min_u32 v97, 29, v97')
    s('v_lshl_add_u32 v96, v97, 4, v96')
    s(f'v_add_u32 v96, {L_U}, v96')
    s('ds_write_b128 v96, v[100:103]')
    stamp(s)

    s('v_and_b32 v94, 31, v1')
    s('v_lshrrev_b32 v95, 5, v1')
    s('v_bfe_u32 v96, v1, 1, 3')
    s('v_xor_b32 v96, v96, v95')
    s('v_lshrrev_b32 v97, 4, v94')
    s('v_lshlrev_b32 v97, 12, v97')
    s('v_and_b32 v98, 15, v94')
    s('v_lshl_add_u32 v97, v98, 7, v97')
    s(f's_lshr_b32 {S_T0}, {S_W}, 2')
    s(f's_lshl_b32 {S_T0}, {S_T0}, 14')
    s(f'v_add_u32 v97, {S_T0}, v97')
    s('v_lshl_add_u32 v72, v96, 4, v97')
    for k in range(1, 4): s(f'v_xor_b32 v{72+k}, {32*k}, v72')
    for k in range(4): s(f'v_add_u32 v{76+k}, 0x10000, v{72+k}')
    s('v_bfe_u32 v96, v1, 2, 2')
    s(f's_and_b32 {S_T0}, {S_W}, 3')
    s(f'v_xor_b32 v97, {S_T0}, v96')
    s('v_lshlrev_b32 v97, 6, v97')
    s('v_lshl_add_u32 v97, v96, 8, v97')
    s('v_lshl_add_u32 v97, v95, 12, v97')
    s('v_bfe_u32 v98, v1, 4, 1')
    s('v_lshl_add_u32 v97, v98, 5, v97')
    s('v_and_b32 v98, 3, v1')
    s('v_lshl_add_u32 v97, v98, 3, v97')
    s('v_add_u32 v80, 2048, v97')
    s('v_add_u32 v81, 0x10000, v80')
    s('v_mov_b32 v82, 0')
    ACC = [16, 32]
    FA = [48, 52]; FB = [[56, 60], [64, 68]]
    def g1_reads(i, ks, buf):
        sl = i % 3
        xa = (72 if sl < 2 else 76) + ks; wa = 80 if sl < 2 else 81
        so = (sl % 2) * SLOT
        hs = [s(f'ds_read_b64_tr_b16 v[{FA[buf]}:{FA[buf]+1}], v{wa} offset:{so + ks*8192}'),
              s(f'ds_read_b64_tr_b16 v[{FA[buf]+2}:{FA[buf]+3}], v{wa} offset:{so + ks*8192 + 1024}')]
        for tt in range(2):
            hs.append(s(f'ds_read_b128 {V(FB[buf][tt], 4)}, v{xa} offset:{so + tt*8192}'))
        return hs
    def g1_mma(buf, hs, first):
        s.wait(hs[:3])
        s(f'v_mfma_f32_32x32x16_bf16 {V(ACC[0],16)}, {V(FA[buf],4)}, {V(FB[buf][0],4)}, {"0" if first else V(ACC[0],16)}')
        s(f'v_dot2c_f32_bf16 v82, {S_ONES}, v{FA[buf]}')
        s(f'v_dot2c_f32_bf16 v82, {S_ONES}, v{FA[buf]+1}')
        s.wait(hs[3])
        s(f'v_mfma_f32_32x32x16_bf16 {V(ACC[1],16)}, {V(FA[buf],4)}, {V(FB[buf][1],4)}, {"0" if first else V(ACC[1],16)}')
        s(f'v_dot2c_f32_bf16 v82, {S_ONES}, v{FA[buf]+2}')
        s(f'v_dot2c_f32_bf16 v82, {S_ONES}, v{FA[buf]+3}')
    pend = None
    n = 0
    for i in range(8):
        s.wait(dma[i])
        s.drain(lgkm=True)
        s('s_barrier')
        for ks in range(4):
            hs = g1_reads(i, ks, n % 2)
            if ks == 0 and 1 <= i <= 5: issue_dma(s, i + 2)
            if pend is not None: g1_mma(*pend)
            pend = (n % 2, hs, n == 0)
            n += 1
    g1_mma(*pend)
    stamp(s)
    poll(s, WS_F1, 4, 84, 'v3')
    stamp(s)
    s(f's_lshl_b32 {S_T0}, {S_RB}, 1')
    s(f's_lshr_b32 {S_T1}, {S_W}, 2')
    s(f's_add_u32 {S_T0}, {S_T0}, {S_T1}')
    s(f's_lshl_b32 {S_T1}, {S_T0}, 8')
    s(f's_add_u32 {S_T1}, {S_T1}, {WS_STATS}')
    s('v_lshlrev_b32 v94, 2, v94')
    hS = [s(f'buffer_load_dword v{84+tt}, v94, {rWS}, {S_T1} offen offset:{128*tt} sc1') for tt in range(2)]
    s('v_lshrrev_b32 v96, 1, v0')
    s('v_and_b32 v97, 1, v0')
    s('v_lshlrev_b32 v98, 13, v96')
    s('v_lshl_add_u32 v98, v97, 4, v98')
    s(f's_lshl_b32 {S_T1}, {S_Q}, 5')
    s(f's_add_u32 {S_T1}, {S_T1}, {WS_XNB}')
    hU = s(f'buffer_load_dwordx4 v[88:91], v98, {rWS}, {S_T1} offen sc1')
    s(f'v_mul_u32_u24 v97, {US}, v97')
    s('v_lshl_add_u32 v97, v96, 4, v97')
    s(f'v_add_u32 v92, {L_U + 480}, v97')
    s(f's_or_b32 {S_T1}, s2, {S_W}')
    s(f's_cmp_lg_u32 {S_T1}, 0')
    s(f's_cselect_b32 {S_T1}, {WS_SIZE}, {WS_EPOCH}')
    s(f'buffer_store_dword v2, v83, {rWS}, {S_T1} offen sc1')
    s(f's_mul_i32 {S_T0}, {S_T0}, 112')
    s(f's_lshl_b32 {S_T1}, {S_CB}, 3')
    s(f's_add_u32 {S_T0}, {S_T0}, {S_T1}')
    s(f's_and_b32 {S_T1}, {S_W}, 3')
    s(f's_lshl_b32 {S_T1}, {S_T1}, 1')
    s(f's_add_u32 {S_T0}, {S_T0}, {S_T1}')
    s(f's_lshl_b32 {S_T0}, {S_T0}, 11')
    s(f's_add_u32 s33, {S_T0}, {WS_ACT}')
    s(f's_mul_i32 {S_T0}, {S_NB}, 7')
    s(f's_lshr_b32 {S_T0}, {S_T0}, 2')
    s(f's_and_b32 {S_T1}, {S_J}, 3')
    s(f's_mul_i32 {S_T1}, {S_T1}, 7')
    s(f's_lshr_b32 {S_T1}, {S_T1}, 1')
    s(f's_add_u32 {S_T0}, {S_T0}, {S_T1}')
    s(f's_cmp_ge_u32 {S_T0}, 14')
    s(f's_cselect_b32 {S_T1}, 14, 0')
    s(f's_sub_u32 {S_T0}, {S_T0}, {S_T1}')
    s(f's_mul_i32 {S_T2}, {S_W}, 14')
    for i in range(14):
        s(f's_add_u32 {S_T1}, {S_T0}, {S_T2}')
        s(f's_lshl_b32 s{S_SOFF+i}, {S_T1}, 11')
        if i < 13:
            s(f's_add_u32 {S_T0}, {S_T0}, 1')
            s(f's_cmp_eq_u32 {S_T0}, 14')
            s(f's_cselect_b32 {S_T0}, 0, {S_T0}')
    s(f's_mul_i32 {S_T0}, {S_NB}, {112*2048}')
    s(f's_add_u32 {S_T0}, {S_T0}, {WS_W2F}')
    s(f'v_add_u32 v4, {S_T0}, v3')
    s(f's_mul_i32 {S_T0}, {S_RB2}, {112*2048}')
    s(f's_add_u32 {S_T0}, {S_T0}, {WS_ACT}')
    s(f'v_add_u32 v5, {S_T0}, v3')
    W2 = 144
    w2l = Stream(); hW = {}
    for i in range(14):
        for dt in range(2):
            hW[i, dt] = w2l(f'buffer_load_dwordx4 {V(W2 + 8*i + 4*dt, 4)}, v4, {rWS}, s{S_SOFF+i} offen offset:{1024*dt} sc1')
    w2a = Stream(); w2a.l = w2l.l[:12]
    w2b = Stream(); w2b.l = w2l.l[12:]
    s.wait(hB1)
    s('v_cvt_pk_bf16_f32 v48, v82, v82')
    s('v_lshlrev_b32 v49, 16, v48')
    s('v_sub_f32 v49, v82, v49')
    s('v_cvt_pk_bf16_f32 v48, v82, v49')
    s('v_cmp_gt_u32 vcc, 32, v1')
    s('v_cndmask_b32 v49, 0, v12, vcc')
    s('v_mov_b32 v50, 0'); s('v_mov_b32 v51, 0')
    s.wait(hS)
    for tt in range(2):
        b_ = 56 + 4*tt
        s(f'v_and_b32 v{b_}, 0xffff, v{84+tt}')
        s(f'v_lshl_or_b32 v{b_}, v{b_}, 16, v{b_}')
        s(f'v_xor_b32 v{b_}, 0x80008000, v{b_}')
        s(f'v_lshrrev_b32 v{b_+1}, 16, v{84+tt}')
        s(f'v_mov_b32 v{b_+2}, 0'); s(f'v_mov_b32 v{b_+3}, 0')
        s(f'v_mfma_f32_32x32x16_bf16 {V(ACC[tt],16)}, v[48:51], {V(b_,4)}, {V(ACC[tt],16)}')
        c_ = 64 + 4*tt
        s(f'v_and_b32 v{c_}, 0xffff0000, v{84+tt}')
        s(f'v_rcp_f32 v{c_}, v{c_}')
        s(f'v_mul_f32 v{c_+1}, -2.0, v{c_}')
        s(f'v_mul_f32 v{c_+2}, {f32(LOG2E)}, v{c_}')
        if VAR == 'sep': s(f'v_mul_f32 v{72+2*tt}, -2.0, v{c_}')
    s.wait(hU)
    s('ds_write_b128 v92, v[88:91]')
    m = Stream()
    pub2 = []
    for tt in range(2):
        c_ = 64 + 4*tt
        for half in range(2):
            T = 96 + 16 * (half)
            a0 = ACC[tt] + 8*half
            for p in range(4):
                m(f'v_pk_mul_f32 {V(T+2*p,2)}, {V(a0+2*p,2)}, {V(c_+2,2)} op_sel_hi:[1,0]')
            for p in range(8):
                m(f'v_exp_f32 v{T+p}, v{T+p}')
            for p in range(4):
                m(f'v_pk_add_f32 {V(T+8+2*p,2)}, {V(T+2*p,2)}, 2.0 op_sel_hi:[1,0]')
            for p in range(4):
                m(f'v_pk_fma_f32 {V(T+2*p,2)}, {V(T+2*p,2)}, {V(T+8+2*p,2)}, 2.0 op_sel_hi:[1,1,0]')
            for p in range(8):
                m(f'v_rcp_f32 v{T+p}, v{T+p}')
            if VAR == 'nop': m('s_nop 3')
            for p in range(4):
                if VAR == 'plain':
                    m(f'v_fma_f32 v{T+2*p}, v{T+2*p}, v{c_+1}, v{c_}')
                    m(f'v_fma_f32 v{T+2*p+1}, v{T+2*p+1}, v{c_+1}, v{c_}')
                elif VAR == 'const':
                    m(f'v_pk_fma_f32 {V(T+2*p,2)}, {V(T+2*p,2)}, -2.0, 1.0 op_sel_hi:[1,0,0]')
                    m(f'v_pk_mul_f32 {V(T+2*p,2)}, {V(T+2*p,2)}, {V(c_,2)} op_sel_hi:[1,0]')
                elif VAR == 'sep':
                    m(f'v_pk_fma_f32 {V(T+2*p,2)}, {V(T+2*p,2)}, {V(72+2*tt,2)}, {V(c_,2)} op_sel_hi:[1,0,0]')
                else:
                    m(f'v_pk_fma_f32 {V(T+2*p,2)}, {V(T+2*p,2)}, {V(c_,2)}, {V(c_,2)} op_sel:[0,1,0] op_sel_hi:[1,1,0]')
            for p in range(4):
                m(f'v_pk_mul_f32 {V(T+2*p,2)}, {V(T+2*p,2)}, {V(a0+2*p,2)}')
            O = 128 + 4 * (2*tt + half)
            for p in range(4):
                m(f'v_cvt_pk_bf16_f32 v{O+p}, v{T+2*p}, v{T+2*p+1}')
            pub2.append(m(f'buffer_store_dwordx4 {V(O,4)}, v3, {rWSO}, s33 offen offset:{half*2048 + tt*1024} sc1'))
    s.ext(interleave(m, w2a, after=lambda i: i.kind == 'trans', per=(0 if VAR == 'noil' else 12/64)))
    stamp(s)
    s('v_and_b32 v94, 15, v1')
    s('v_lshrrev_b32 v95, 4, v1')
    s('v_sub_u32 v96, 15, v94')
    s('v_and_b32 v97, 3, v96')
    s(f'v_mul_u32_u24 v97, {CS}, v97')
    s('v_lshrrev_b32 v96, 2, v96')
    s('v_lshl_add_u32 v97, v96, 3, v97')
    s('v_lshl_add_u32 v97, v95, 4, v97')
    s(f's_lshr_b32 {S_T0}, {S_W}, 2')
    s(f's_and_b32 {S_T1}, {S_W}, 3')
    s(f's_lshl_b32 {S_T1}, {S_T1}, 7')
    s(f's_mul_i32 {S_T2}, {S_T0}, {4*CS}')
    s(f's_add_u32 {S_T2}, {S_T2}, {L_KC}')
    s(f's_sub_u32 {S_T2}, {S_T2}, {S_T1}')
    s(f'v_add_u32 v6, {S_T2}, v97')
    s(f's_mul_i32 {S_T2}, {S_T0}, {US}')
    s(f's_add_u32 {S_T2}, {S_T2}, {L_U + 480 - 32 - 64}')
    s(f's_sub_u32 {S_T2}, {S_T2}, {S_T1}')
    s('v_lshlrev_b32 v97, 5, v94')
    s('v_lshl_add_u32 v97, v95, 4, v97')
    s(f'v_add_u32 v7, {S_T2}, v97')
    s(f's_lshl_b32 {S_T2}, {S_W}, 13')
    s(f'v_add_u32 v8, {S_T2}, v3')
    s.wait(pub2)
    s.drain(lgkm=True)
    s('s_barrier')
    s(f's_lshl_b32 {S_T1}, {S_RB}, 4')
    s(f's_add_u32 {S_T1}, {S_T1}, {S_CB}')
    s(f's_lshl_b32 {S_T1}, {S_T1}, 2')
    s(f's_add_u32 {S_T1}, {S_T1}, {WS_F2}')
    s(f's_cmp_lg_u32 {S_W}, 0')
    s(f's_cselect_b32 {S_T1}, {WS_SIZE}, {S_T1}')
    s('v_mov_b32 v9, 0')
    s(f'buffer_store_dword v2, v9, {rWS}, {S_T1} offen sc1')
    stamp(s)
    c = Stream()
    CA = lambda a: 48 + 4*a
    CB = lambda b: 80 + 4*b
    CA2 = lambda a: CA(a) if a < 4 else 112 + 4*(a-4)
    CB2 = lambda b: CB(b) if b >= 4 else 128 + 4*b
    def ldA(reg, a, rho):
        o = 4032 - 512*a - 64*rho
        return [c(f'ds_read_b64 {V(reg,2)}, v6 offset:{o}'), c(f'ds_read_b64 {V(reg+2,2)}, v6 offset:{o+8}')]
    def ldB(reg, b, rho):
        return [c(f'ds_read_b128 {V(reg,4)}, v7 offset:{512*b - 64*rho + 64}')]
    hA1, hB1_, hA2, hB2 = {}, {}, {}, {}
    hA1[0] = ldA(CA(0), 0, 0)
    for b in range(8): hB1_[b] = ldB(CB(b), b, 0)
    for a in range(1, 8): hA1[a] = ldA(CA(a), a, 0)
    extra = [('A', 4), ('B', 3), ('A', 5), ('B', 2), ('A', 6), ('B', 1), ('A', 7), ('B', 0)]
    for a in range(8):
        for b in range(8 - a):
            c.wait(hA1[a], hB1_[b])
            c(f'v_mfma_f32_16x16x32_bf16 {V(16+4*(a+b),4)}, {V(CA(a),4)}, {V(CB(b),4)}, {"0" if a == 0 else V(16+4*(a+b),4)}')
            if a == 1 and extra:
                k_, i_ = extra.pop(0)
                if k_ == 'A': hA2[i_] = ldA(CA2(i_), i_, 1)
                else: hB2[i_] = ldB(CB2(i_), i_, 1)
            if a == 2 and b == 0 and extra:
                k_, i_ = extra.pop(0)
                hB2[i_] = ldB(CB2(i_), i_, 1)
        if 1 <= a <= 4:
            hA2[a-1] = ldA(CA2(a-1), a-1, 1)
            hB2[8-a] = ldB(CB2(8-a), 8-a, 1)
    pw = []
    for nu in range(7, -1, -1):
        for a in range(nu + 1):
            b = nu - a
            c.wait(hA2[a], hB2[b])
            c(f'v_mfma_f32_16x16x32_bf16 {V(16+4*nu,4)}, {V(CA2(a),4)}, {V(CB2(b),4)}, {V(16+4*nu,4)}')
        if nu <= 5:
            pw.append(c(f'ds_write_b128 v8, {V(16+4*(nu+2),4)} offset:{1024*(nu+2)}'))
    for nu in (1, 0):
        pw.append(c(f'ds_write_b128 v8, {V(16+4*nu,4)} offset:{1024*nu}'))
    s.ext(interleave(c, w2b, per=16/64, start=4))
    s(f's_lshr_b32 {S_T0}, {S_W}, 2')
    s(f's_and_b32 {S_T1}, {S_W}, 3')
    s(f's_lshl_b32 {S_T2}, {S_T0}, 15')
    s(f's_lshl_b32 {S_T3}, {S_T1}, 11')
    s(f's_add_u32 {S_T2}, {S_T2}, {S_T3}')
    s('v_lshrrev_b32 v94, 5, v1')
    s('v_bfe_u32 v95, v1, 1, 4')
    s('v_and_b32 v96, 1, v1')
    s('v_lshlrev_b32 v94, 10, v94')
    s('v_lshl_add_u32 v94, v95, 4, v94')
    s('v_lshl_add_u32 v94, v96, 9, v94')
    s(f'v_add_u32 v94, {S_T2}, v94')
    s(f's_mul_i32 {S_T2}, {S_T0}, {US}')
    s(f's_lshl_b32 {S_T3}, {S_T1}, 10')
    s(f's_add_u32 {S_T2}, {S_T2}, {S_T3}')
    s(f's_add_u32 {S_T2}, {S_T2}, {L_U + 480}')
    s(f'v_add_u32 v95, {S_T2}, v3')
    hu = s('ds_read_b128 v[80:83], v95')
    s.drain(lgkm=True)
    s('s_barrier')
    stamp(s)
    hr = []
    for p in range(4):
        for k in range(2):
            hr.append(s(f'ds_read_b128 {V(48 + 8*p + 4*k, 4)}, v94 offset:{8192*p + 256*k}'))
    s(f's_lshr_b32 {S_T2}, {S_RB2}, 1')
    s(f's_lshl_b32 {S_T2}, {S_T2}, 6')
    s('v_min_u32 v10, 13, v1')
    s(f'v_lshl_add_u32 v10, v10, 2, {S_T2}')
    hF2 = s(f'global_load_dword v11, v10, {sWS} offset:{WS_F2} sc1')
    s.wait(hDS)
    s('v_lshlrev_b32 v12, 16, v13')
    for i in range(4):
        s(f'v_lshlrev_b32 v{84+2*i}, 16, v{80+i}')
        s(f'v_and_b32 v{85+2*i}, 0xffff0000, v{80+i}')
    s.wait(hr[:4])
    for i in range(4):
        s(f'v_pk_fma_f32 {V(84+2*i,2)}, {V(84+2*i,2)}, v[12:13], {V(48+2*i,2)} op_sel_hi:[1,0,1]')
    for i in range(4):
        s(f'v_pk_add_f32 {V(84+2*i,2)}, {V(84+2*i,2)}, {V(56+2*i,2)}')
    s.wait(hr[4:])
    for i in range(4):
        s(f'v_pk_add_f32 {V(64+2*i,2)}, {V(64+2*i,2)}, {V(72+2*i,2)}')
    for i in range(4):
        s(f'v_pk_add_f32 {V(84+2*i,2)}, {V(84+2*i,2)}, {V(64+2*i,2)}')
    for i in range(4):
        s(f'v_cvt_pk_bf16_f32 v{48+i}, v{84+2*i}, v{85+2*i}')
    s(f's_lshl_b32 {S_T2}, {S_Q}, 13')
    s(f's_lshl_b32 {S_T3}, {S_W}, 10')
    s(f's_add_u32 {S_T2}, {S_T2}, {S_T3}')
    s(f's_add_u32 {S_T2}, {S_T2}, {WS_ST}')
    pub3 = s(f'buffer_store_dwordx4 v[48:51], v3, {rWS}, {S_T2} offen sc1')
    stamp(s)
    poll(s, WS_F2, 1, 11, 'v10', pre=hF2)
    stamp(s)
    AR = 80
    hAct = {}
    def ld_act(i):
        for tt in range(2):
            hAct[i, tt] = s(f'buffer_load_dwordx4 {V(AR + 8*(i % 8) + 4*tt, 4)}, v5, {rWS}, s{S_SOFF+i} offen offset:{1024*tt} sc1')
    for i in range(4): ld_act(i)
    s.wait(pub3)
    s('s_barrier')
    s(f's_lshl_b32 {S_T1}, {S_Q}, 2')
    s(f's_add_u32 {S_T1}, {S_T1}, {WS_F3}')
    s(f's_cmp_lg_u32 {S_W}, 0')
    s(f's_cselect_b32 {S_T1}, {WS_SIZE}, {S_T1}')
    s(f'buffer_store_dword v2, v9, {rWS}, {S_T1} offen sc1')
    for i in range(4, 8): ld_act(i)
    A2 = lambda dt, tt: 16 + 16 * (2*dt + tt)
    for i in range(14):
        for tt in range(2):
            s.wait(hAct[i, tt], hW[i, 0], hW[i, 1])
            for dt in range(2):
                s(f'v_mfma_f32_32x32x16_bf16 {V(A2(dt,tt),16)}, {V(W2 + 8*i + 4*dt,4)}, {V(AR + 8*(i%8) + 4*tt,4)}, {"0" if i == 0 else V(A2(dt,tt),16)}')
        if i + 8 < 14: ld_act(i + 8)
        if i == 7:
            s(f's_lshl_b32 {S_T2}, {S_NB}, 7')
            s('v_and_b32 v10, 31, v1')
            s(f'v_lshl_add_u32 v10, v10, 2, {S_T2}')
    stamp(s)
    hF3 = s(f'global_load_dword v11, v10, {sWS} offset:{WS_F3} sc1')
    s('v_and_b32 v144, 15, v1')
    s(f's_and_b32 {S_T0}, {S_W}, 3')
    s(f's_lshl_b32 {S_T0}, {S_T0}, 4')
    s(f'v_add_u32 v144, {S_T0}, v144')
    s('v_lshrrev_b32 v145, 4, v1')
    s(f's_lshr_b32 {S_T1}, {S_W}, 2')
    s(f's_lshl_b32 {S_T2}, {S_RB2}, 16')
    s(f's_lshl_b32 {S_T3}, {S_NB}, 7')
    s(f's_add_u32 {S_T2}, {S_T2}, {S_T3}')
    s(f's_lshl_b32 {S_T3}, {S_T1}, 6')
    s(f's_add_u32 {S_T2}, {S_T2}, {S_T3}')
    s(f'v_lshl_add_u32 v146, v144, 10, {S_T2}')
    s('v_lshl_add_u32 v146, v145, 4, v146')
    hX = s(f'global_load_dwordx4 v[148:151], v146, {sX}')
    s('v_and_b32 v156, 31, v1')
    s('v_lshrrev_b32 v157, 5, v1')
    s('v_and_b32 v158, 7, v1')
    s('v_xor_b32 v157, v157, v158')
    s(f's_lshl_b32 {S_T2}, {S_W}, 14')
    s(f'v_lshl_add_u32 v156, v156, 8, {S_T2}')
    s('v_lshl_add_u32 v152, v157, 4, v156')
    for q_ in range(1, 4): s(f'v_xor_b32 v{152+q_}, {32*q_}, v152')
    for tt in range(2):
        for dt in range(2):
            for q_ in range(4):
                s(f'ds_write_b128 v{152+q_}, {V(A2(dt,tt) + 4*q_, 4)} offset:{8192*tt + 128*dt}')
    poll(s, WS_F3, 1, 11, 'v10', pre=hF3)
    s('v_lshrrev_b32 v156, 3, v0')
    s('v_and_b32 v157, 7, v0')
    s('v_lshlrev_b32 v158, 12, v156')
    s('v_lshl_add_u32 v158, v157, 4, v158')
    s(f's_lshl_b32 {S_T2}, {S_NB}, 18')
    s(f's_lshl_b32 {S_T3}, {S_RB2}, 7')
    s(f's_add_u32 {S_T2}, {S_T2}, {S_T3}')
    s(f's_add_u32 {S_T2}, {S_T2}, {WS_ST}')
    hSt = s(f'buffer_load_dwordx4 v[160:163], v158, {rWS}, {S_T2} offen sc1')
    s('v_lshlrev_b32 v158, 4, v0')
    s(f'v_add_u32 v158, {L_ST}, v158')
    s('v_and_b32 v156, 7, v144')
    s('v_lshlrev_b32 v157, 1, v145')
    s('v_xor_b32 v156, v156, v157')
    s(f's_lshl_b32 {S_T2}, {S_T1}, 7')
    s(f'v_lshl_add_u32 v164, v144, 8, {S_T2}')
    s('v_lshl_add_u32 v164, v156, 4, v164')
    s('v_xor_b32 v165, 16, v164')
    s('v_add_u32 v166, 0x10000, v164')
    s('v_add_u32 v167, 0x10000, v165')
    s('v_bfe_u32 v156, v1, 2, 2')
    s('v_lshl_add_u32 v156, v145, 3, v156')
    s('v_lshlrev_b32 v156, 7, v156')
    s('v_and_b32 v157, 3, v1')
    s('v_lshl_add_u32 v156, v157, 3, v156')
    s(f's_lshl_b32 {S_T2}, {S_T1}, 12')
    s(f's_lshl_b32 {S_T3}, {S_T0}, 1')
    s(f's_add_u32 {S_T2}, {S_T2}, {S_T3}')
    s(f's_add_u32 {S_T2}, {S_T2}, {L_ST}')
    s(f'v_add_u32 v168, {S_T2}, v156')
    s.wait(hSt)
    s('ds_write_b128 v158, v[160:163]')
    s.drain(lgkm=True)
    s('s_barrier')
    stamp(s)
    hr = []
    for p in range(8):
        for k in range(2):
            hr.append(s(f'ds_read_b128 {V(16 + 8*p + 4*k, 4)}, v{164 + k + 2*(p//4)} offset:{16384*(p%4)}'))
    hs0 = s('ds_read_b64_tr_b16 v[160:161], v168')
    hs1 = s('ds_read_b64_tr_b16 v[162:163], v168 offset:512')
    for p in range(1, 8):
        s.wait(hr[:2*p+2])
        for i in range(4):
            s(f'v_pk_add_f32 {V(16+2*i,2)}, {V(16+2*i,2)}, {V(16+8*p+2*i,2)}')
    s(f's_mov_b32 {S_T2}, {f32(-LOG2E)}')
    for i in range(8): s(f'v_mul_f32 v{24+i}, {S_T2}, v{16+i}')
    for i in range(8): s(f'v_exp_f32 v{24+i}, v{24+i}')
    for i in range(4): s(f'v_pk_add_f32 {V(24+2*i,2)}, {V(24+2*i,2)}, 1.0 op_sel_hi:[1,0]')
    for i in range(8): s(f'v_rcp_f32 v{24+i}, v{24+i}')
    s.wait(hs0, hs1, hX)
    for i in range(4):
        s(f'v_lshlrev_b32 v{32+2*i}, 16, v{160+i}')
        s(f'v_and_b32 v{33+2*i}, 0xffff0000, v{160+i}')
        s(f'v_lshlrev_b32 v{40+2*i}, 16, v{148+i}')
        s(f'v_and_b32 v{41+2*i}, 0xffff0000, v{148+i}')
    for i in range(4): s(f'v_pk_mul_f32 {V(16+2*i,2)}, {V(16+2*i,2)}, {V(24+2*i,2)}')
    for i in range(4): s(f'v_pk_fma_f32 {V(16+2*i,2)}, {V(16+2*i,2)}, {V(32+2*i,2)}, {V(40+2*i,2)}')
    for i in range(4): s(f'v_cvt_pk_bf16_f32 v{24+i}, v{16+2*i}, v{17+2*i}')
    s(f'global_store_dwordx4 v146, v[24:27], {sOUT}')
    if STAMPS:
        s.drain(vm=True)
        stamp(s)
        s(f's_lshl_b32 {S_T0}, s2, 3')
        s(f's_add_u32 {S_T0}, {S_T0}, {S_W}')
        s(f's_lshl_b32 {S_T0}, {S_T0}, 8')
        s(f's_add_u32 {S_T0}, {S_T0}, {WS_STAMP}')
        s('v_lshlrev_b32 v16, 3, v1')
        s('v_cmp_gt_u32 vcc, 32, v1')
        s(f'v_mov_b32 v17, {WS_SIZE}')
        s('v_cndmask_b32 v16, v17, v16, vcc')
        s(f'buffer_store_dwordx2 v[14:15], v16, {rWS}, {S_T0} offen')
    s.label('Lend')
    s('s_endpgm')
    return s

def main(out):
    s = build()
    L = finish(s)
    body = render(L)
    tab = offsets_table()
    vals = [(v if v is not None else L_TZ) for v in tab]
    hdr = open('recurrent_scan__ssm_conv_s4d__dense_activation_mish__prompt.s.ref').read().split('; Override')[0]
    txt = hdr + f'; @launch grid=(256,1,1) block=(512,1,1) lds={LDS_BYTES}\n'
    txt += f'.amdgcn_target "amdgcn-amd-amdhsa--gfx950"\n.text\n.globl {NAME}\n.p2align 8\n.type {NAME},@function\n{NAME}:\n'
    txt += body + '\n' + '\n'.join(x if x.endswith(':') else '    ' + x for x in tail) + '\n'
    txt += '.p2align 6\n.type Ltab,@object\nLtab:\n'
    for i in range(0, len(vals), 8):
        txt += '    .short ' + ', '.join(str(v) for v in vals[i:i+8]) + '\n'
    txt += f'''.size Ltab, {2*len(vals)}
.section .rodata,"a"
.p2align 6
.amdhsa_kernel {NAME}
  .amdhsa_next_free_vgpr 256
  .amdhsa_next_free_sgpr 96
  .amdhsa_accum_offset 256
  .amdhsa_group_segment_fixed_size 0
  .amdhsa_kernarg_size 112
  .amdhsa_user_sgpr_count 2
  .amdhsa_user_sgpr_kernarg_segment_ptr 1
  .amdhsa_system_sgpr_workgroup_id_x 1
.end_amdhsa_kernel
'''
    open(out, 'w').write(txt)
    n = sum(1 for i in L if i.kind not in ('label', 'raw'))
    print('instructions:', n, 'nops:', sum(1 for i in L if i.text.startswith('s_nop')), 'stamps:', nstamp[0])

if __name__ == '__main__':
    main(sys.argv[1])
```
